```python
import torch

def _softmax(x, axis=-1):
    return torch.softmax(x, dim=axis)
def _gelu(x):
    return torch.nn.functional.gelu(x, approximate="tanh")
def _silu(x):
    return torch.nn.functional.silu(x)
def _sigmoid(x):
    return torch.sigmoid(x)
def _layernorm(x, axis=-1, eps=1e-5):
    m = x.mean(dim=axis, keepdim=True)
    v = x.var(dim=axis, keepdim=True, unbiased=False)
    return (x - m) / torch.sqrt(v + eps)
def _scatter_add(tgt, idx, src, axis=0):
    return tgt.clone().index_add_(axis, idx, src)
def _segment_sum(src, seg, n):
    out = torch.zeros((n,) + src.shape[1:], dtype=src.dtype)
    return out.index_add_(0, seg, src)
def _pad(x, pw):
    flat = tuple(v for pair in reversed(pw) for v in pair)
    return torch.nn.functional.pad(x, flat)

kernel_name = 'gather_scatter__cheap_equivariant_egnn__graph'

def setup_inputs():

    _w = (lambda a: (lambda t: t.to(torch.bfloat16) if t.is_floating_point() else t)(torch.as_tensor(a)))
    N, deg, D, De = 12500, 64, 64, max(0, 1)
    E = N * deg
    return {
        "h": _w((lambda *s: torch.randn(*s, dtype=torch.bfloat16) * 0.1)(N, D)),
        "pos": _w((lambda *s: torch.randn(*s, dtype=torch.bfloat16) * 0.8)(N, 3)),
        "e_attr": _w((lambda *s: torch.randn(*s, dtype=torch.bfloat16) * 0.8)(E, De)),
        "src": _w((lambda lo, hi, *s: torch.randint(lo, hi, s))(0, N, E).to(torch.int64)),
        "dst": _w((lambda lo, hi, *s: torch.randint(lo, hi, s))(0, N, E).to(torch.int64)),
        "w_e": _w(0.1 * (lambda *s: torch.randn(*s, dtype=torch.bfloat16) * 0.8)(2 * D + 1 + De, D)),
        "w_x": _w(0.1 * (lambda *s: torch.randn(*s, dtype=torch.bfloat16) * 0.1)(D, 1)),
        "w_h": _w(0.1 * (lambda *s: torch.randn(*s, dtype=torch.bfloat16) * 0.1)(2 * D, D)),
    }

def reference(h, pos, e_attr, src, dst, w_e, w_x, w_h):
    N, D = h.shape[0], h.shape[1]
    diff = pos[dst] - pos[src]
    dist2 = torch.sum(diff * diff, axis=-1, keepdims=True)
    e_in = torch.concatenate([h[dst], h[src], dist2, e_attr], axis=-1)
    m_ij = _silu(e_in @ w_e)
    coord_scale = m_ij @ w_x
    pos_new = pos + _segment_sum(diff * coord_scale, dst, N)
    m_i = _segment_sum(m_ij, dst, N)
    h_new = h + _silu(torch.concatenate([h, m_i], axis=-1) @ w_h)
    return h_new, pos_new
```

```python
import sys, struct, math

N = 12500
E = 800000
CH = 3128
NCH = 256
CHP = 3136
WS_B = 0
WS_P = 0x190000
WS_H = 0x1D0000
WS_R = 0x210000
WS_END = WS_R + NCH * CHP * 8 + 4096
OUT_BYTES = 1675000
OUT_POS = 1600000

def f2u(x):
    return struct.unpack('<I', struct.pack('<f', x))[0]
SCALE = -math.log2(math.e)
UNSCALE = -math.log(2.0)

class A:
    def __init__(self):
        self.l = []
    def __call__(self, s):
        for x in s.split('\n'):
            x = x.strip()
            if x:
                self.l.append(x if x.endswith(':') else '    ' + x)
    def text(self):
        return '\n'.join(self.l) + '\n'

def vr(b, n=1):
    return f"v{b}" if n == 1 else f"v[{b}:{b+n-1}]"
def sr(b, n=1):
    return f"s{b}" if n == 1 else f"s[{b}:{b+n-1}]"

def srd(a, d, base, size, w3="0x20000", w1or=None, add=0):
    if add:
        a(f"s_add_u32 s{d}, s{base}, {add}")
        a(f"s_addc_u32 s{d+1}, s{base+1}, 0")
        if w1or is not None:
            a(f"s_or_b32 s{d+1}, s{d+1}, {w1or}")
    else:
        a(f"s_mov_b32 s{d}, s{base}")
        if w1or is not None:
            a(f"s_or_b32 s{d+1}, s{base+1}, {w1or}")
        else:
            a(f"s_mov_b32 s{d+1}, s{base+1}")
    a(f"s_mov_b32 s{d+2}, {size}")
    a(f"s_mov_b32 s{d+3}, {w3}")

def dpp_scan(a, regs, full):
    steps = ["row_shr:1 row_mask:0xf bank_mask:0xf bound_ctrl:0",
             "row_shr:2 row_mask:0xf bank_mask:0xf bound_ctrl:0",
             "row_shr:4 row_mask:0xf bank_mask:0xf bound_ctrl:0",
             "row_shr:8 row_mask:0xf bank_mask:0xf bound_ctrl:0",
             "row_bcast:15 row_mask:0xa bank_mask:0xf"]
    if full:
        steps.append("row_bcast:31 row_mask:0xc bank_mask:0xf")
    for st in steps:
        a(f"s_nop {max(0, 2 - len(regs))}")
        for r in regs:
            a(f"v_add_u32_dpp v{r}, v{r}, v{r} {st}")
    a("s_nop 1")

K1_HIST = 0
K1_BASE = 1024
K1_REC = 2048
K1_W = K1_REC + CHP * 8
K1_LDS = K1_W + 16384

def gen_k1(a):
    a("""
.globl egnn_part_kernel
.p2align 8
.type egnn_part_kernel,@function
egnn_part_kernel:
s_cmp_ge_u32 s2, 256
s_cbranch_scc1 K1_END
s_load_dwordx16 s[4:19], s[0:1], 0
s_load_dwordx2 s[22:23], s[0:1], 80
v_lshrrev_b32 v1, 6, v0
v_and_b32 v2, 63, v0
v_readfirstlane_b32 s3, v1
v_lshlrev_b32 v3, 2, v0
v_mov_b32 v4, 0
s_cmp_ge_u32 s3, 13
s_cbranch_scc1 K1_NODE
s_cmp_ge_u32 s3, 4
s_cbranch_scc1 K1_NOZERO
ds_write_b32 v3, v4
K1_NOZERO:
s_mul_i32 s40, s2, %d
s_lshr_b32 s41, s40, 1
s_movk_i32 s42, %d
s_cmp_eq_u32 s2, 255
s_cselect_b32 s42, s42, %d
v_lshlrev_b32 v5, 4, v0
v_lshlrev_b32 v6, 3, v0
v_cmp_gt_u32 s[44:45], s42, v0
s_mov_b32 s46, 599187
s_mov_b32 s47, 85599
s_mov_b32 s48, 200
s_mov_b32 s49, -3584
s_mov_b32 s50, 0xffff0000
s_waitcnt lgkmcnt(0)
""" % (CH * 4, (E - 255 * CH) // 4, CH // 4))
    srd(a, 24, 12, E * 4)
    a("buffer_load_dwordx4 v[8:11], v5, s[24:27], s40 offen")
    srd(a, 28, 10, E * 4)
    a("buffer_load_dwordx4 v[12:15], v5, s[28:31], s40 offen")
    srd(a, 32, 8, E * 2)
    a("buffer_load_dwordx2 v[16:17], v6, s[32:35], s41 offen")
    srd(a, 36, 22, WS_END)
    a("""
v_mov_b32 v7, 1
s_barrier
s_mov_b64 exec, s[44:45]
s_waitcnt vmcnt(2)
""")
    for i in range(4):
        a(f"""
v_lshlrev_b32 v18, 10, v{8+i}
v_mul_hi_u32_u24 v{20+i}, s47, v18
v_mul_hi_u32_u24 v19, s46, v18
v_lshlrev_b32 v{20+i}, 2, v{20+i}
v_mul_u32_u24 v{24+i}, 264, v{8+i}
ds_add_rtn_u32 v{28+i}, v{20+i}, v7
v_mad_u32_u24 v{24+i}, v19, s48, v{24+i}
v_mad_i32_i24 v{24+i}, v{20+i}, s49, v{24+i}
""")
    a("""
s_mov_b64 exec, -1
v_lshlrev_b32 v5, 4, v2
s_waitcnt lgkmcnt(0)
s_barrier
ds_read_b128 v[32:35], v5
s_waitcnt lgkmcnt(0)
v_add_u32 v37, v32, v33
v_add_u32 v38, v37, v34
v_add_u32 v39, v38, v35
v_mov_b32 v40, v39
""")
    dpp_scan(a, [40], True)
    a(f"""
v_sub_u32 v40, v40, v39
v_add_u32 v41, v40, v32
v_add_u32 v42, v40, v37
v_add_u32 v43, v40, v38
ds_write_b128 v5, v[40:43] offset:{K1_BASE}
v_mov_b32 v56, v5
s_cmp_lg_u32 s3, 12
s_cbranch_scc1 K1_NOHDR
v_lshlrev_b32 v44, 3, v40
v_lshlrev_b32 v45, 3, v41
v_lshlrev_b32 v46, 3, v42
v_lshlrev_b32 v47, 3, v43
v_lshl_or_b32 v44, v32, 16, v44
v_lshl_or_b32 v45, v33, 16, v45
v_lshl_or_b32 v46, v34, 16, v46
v_lshl_or_b32 v47, v35, 16, v47
K1_NOHDR:
s_mov_b64 exec, s[44:45]
s_waitcnt lgkmcnt(0)
""")
    for i in range(4):
        a(f"ds_read_b32 v{32+i}, v{20+i} offset:{K1_BASE}")
    a("s_waitcnt vmcnt(0)")
    for i in range(4):
        a(f"v_lshlrev_b32 v{48+2*i}, 2, v{12+i}")
        if i % 2 == 0:
            a(f"v_lshl_or_b32 v{49+2*i}, v{16+i//2}, 16, v{24+i}")
        else:
            a(f"v_and_or_b32 v{49+2*i}, v{16+i//2}, s50, v{24+i}")
    a("s_waitcnt lgkmcnt(0)")
    for i in range(4):
        a(f"v_add_lshl_u32 v{32+i}, v{32+i}, v{28+i}, 3")
    for i in range(4):
        a(f"ds_write_b64 v{32+i}, v[{48+2*i}:{49+2*i}] offset:{K1_REC}")
    a(f"""
s_mov_b64 exec, -1
v_lshlrev_b32 v5, 4, v0
s_mul_i32 s43, s2, {CHP*8}
s_add_u32 s43, s43, {WS_R}
s_add_u32 s51, s43, {832*16}
v_cmp_gt_u32 vcc, {CHP//2 - 832}, v0
s_waitcnt lgkmcnt(0)
s_barrier
ds_read_b128 v[8:11], v5 offset:{K1_REC}
ds_read_b128 v[12:15], v5 offset:{K1_REC + 832*16}
s_cmp_lg_u32 s3, 12
s_cbranch_scc1 K1_NOHDR2
s_lshl_b32 s52, s2, 10
s_add_u32 s52, s52, {WS_H}
buffer_store_dwordx4 v[44:47], v56, s[36:39], s52 offen
K1_NOHDR2:
s_waitcnt lgkmcnt(1)
buffer_store_dwordx4 v[8:11], v5, s[36:39], s43 offen
s_and_b64 exec, exec, vcc
s_waitcnt lgkmcnt(0)
buffer_store_dwordx4 v[12:15], v5, s[36:39], s51 offen
s_endpgm
K1_NODE:
s_mul_i32 s40, s2, 49
s_waitcnt lgkmcnt(0)
""")
    srd(a, 36, 22, WS_END)
    a("s_cmp_ge_u32 s3, 14\ns_cbranch_scc1 K1_BTAB")
    srd(a, 24, 6, N * 6)
    a(f"""
v_add_u32 v5, s40, v2
v_mul_u32_u24 v6, 6, v5
v_cmp_gt_u32 vcc, 49, v2
buffer_load_ushort v8, v6, s[24:27], 0 offen
buffer_load_ushort v9, v6, s[24:27], 0 offen offset:2
buffer_load_ushort v10, v6, s[24:27], 0 offen offset:4
v_lshlrev_b32 v5, 4, v5
v_mov_b32 v11, 0
s_mov_b32 s41, {WS_P}
s_and_b64 exec, exec, vcc
s_barrier
s_barrier
s_waitcnt vmcnt(0)
v_lshlrev_b32 v8, 16, v8
v_lshlrev_b32 v9, 16, v9
v_lshlrev_b32 v10, 16, v10
buffer_store_dwordx4 v[8:11], v5, s[36:39], s41 offen
s_endpgm
K1_BTAB:
s_sub_u32 s3, s3, 14
""")
    srd(a, 24, 4, N * 128)
    srd(a, 28, 14, 130 * 128)
    a(f"""
s_lshl_b32 s41, s3, 13
s_add_u32 s41, s41, {K1_W}
v_lshlrev_b32 v5, 4, v2
s_mov_b32 s42, 8192
""")
    for i in range(8):
        a(f"s_add_u32 m0, s41, {i*1024}")
        a("s_nop 0") if i == 0 else a("s_add_u32 s42, s42, 1024")
        a(f"buffer_load_dwordx4 v5, s[28:31], s42 offen lds")
    a(f"""
s_lshl_b32 s43, s3, 5
s_add_u32 s40, s40, s43
s_lshl_b32 s40, s40, 7
v_and_b32 v6, 31, v2
v_lshrrev_b32 v7, 5, v2
v_lshlrev_b32 v8, 7, v6
v_lshl_add_u32 v8, v7, 4, v8
""")
    for s in range(4):
        a(f"buffer_load_dwordx4 v[{12+4*s}:{15+4*s}], v8, s[24:27], s40 offen offset:{32*s}")
    a(f"""
v_bfe_u32 v9, v2, 2, 2
v_lshl_add_u32 v9, v7, 3, v9
v_lshlrev_b32 v9, 7, v9
v_bfe_u32 v10, v2, 4, 1
v_lshl_add_u32 v9, v10, 5, v9
v_and_b32 v10, 3, v2
v_lshl_add_u32 v9, v10, 3, v9
v_add_u32 v9, s41, v9
v_lshlrev_b32 v10, 9, v7
v_lshl_add_u32 v10, v6, 2, v10
s_mov_b32 s44, {f2u(SCALE):#x}
s_mov_b32 s45, 0x7fff0000
s_mov_b32 s46, 0xffff0000
s_barrier
s_barrier
s_waitcnt vmcnt(4)
""")
    for cb in range(2):
        for s in range(4):
            for u in range(2):
                r = 32 + cb*16 + s*4 + u*2
                a(f"ds_read_b64_tr_b16 v[{r}:{r+1}], v9 offset:{(16*s + 4*u)*128 + cb*64}")
        if cb == 0:
            pass
    a("s_waitcnt vmcnt(0) lgkmcnt(8)")
    for s in range(4):
        c = "0" if s == 0 else "v[64:79]"
        a(f"v_mfma_f32_32x32x16_bf16 v[64:79], v[{12+4*s}:{15+4*s}], v[{32+4*s}:{35+4*s}], {c}")
    a("s_waitcnt lgkmcnt(0)")
    for s in range(4):
        c = "0" if s == 0 else "v[80:95]"
        a(f"v_mfma_f32_32x32x16_bf16 v[80:95], v[{12+4*s}:{15+4*s}], v[{48+4*s}:{51+4*s}], {c}")
    a("s_nop 7")
    for i in range(16):
        a(f"v_mul_f32 v{64+i}, s44, v{64+i}")
    for i in range(16):
        a(f"v_cvt_pk_bf16_f32 v{64+i}, v{64+i}, 0")
    def pack(i):
        a(f"""
v_mul_f32 v{80+i}, s44, v{80+i}
v_and_b32 v11, 0x7fffffff, v{80+i}
v_add_u32 v11, 0x8000, v11
v_sub_u32_e64 v11, v11, v{64+i} clamp
v_bfi_b32 v11, s45, v11, v{80+i}
v_and_or_b32 v{80+i}, v11, s46, v{64+i}
buffer_store_dword v{80+i}, v10, s[36:39], s40 offen offset:{(8*(i//4) + i%4)*128}
""")
    for i in range(8):
        pack(i)
    a("s_cmp_lg_u32 s3, 0\ns_cbranch_scc1 K1_BT1")
    for i in range(8, 16):
        pack(i)
    a("s_endpgm\nK1_BT1:\ns_mov_b32 exec_hi, 0")
    pack(8)
    a("K1_END:\ns_endpgm")

L_PD = 0
L_CNT = 1024
L_BASE = 2048
L_WXT = 3072
L_ROFF = 3328
L_RMETA = L_ROFF + 34048
L_IMG = L_RMETA + 34048
L_MS = L_IMG + 8 * 4096
L_PS = L_MS + 7 * 2048 - 2048
L_AT = L_PS + 8 * 2048
L_WH = L_AT + 7 * 2048
K2_LDS = L_WH + 16384
L_W1 = L_MS
L_X = L_IMG
XSTR = 144
assert K2_LDS <= 163840
ST0 = L_ROFF // 256
ST64 = L_RMETA // 256
assert L_IMG % 64 == 0

class R:
    pass
V = R()
_n = [1]
def alloc(name, n=1, align=1):
    b = (_n[0] + align - 1) // align * align
    setattr(V, name, b)
    _n[0] = b + n
for nm, n, al in [("lane", 1, 1), ("asel", 16, 2), ("wx", 16, 2), ("z", 4, 2), ("d0", 16, 2), ("ga", 16, 2), ("gb", 16, 2),
                  ("t", 16, 2), ("m0", 8, 2), ("m1", 8, 2), ("a0", 16, 2), ("a1", 16, 2), ("x", 8, 2), ("sel", 8, 2),
                  ("ofs", 16, 2), ("rec", 2, 2), ("ps", 4, 2), ("pd", 4, 2), ("s", 2, 2), ("w", 1, 1), ("d2", 1, 1),
                  ("sa", 1, 1), ("reca", 1, 1), ("ofsa", 1, 1), ("xa0", 1, 1), ("xa1", 1, 1), ("tra0", 1, 1), ("tra1", 1, 1),
                  ("rowb", 1, 1), ("wa", 1, 1), ("ata", 1, 1), ("atb", 1, 1), ("fa", 1, 1), ("wxa", 1, 1), ("l4", 1, 1),
                  ("ra", 8, 2), ("rp", 1, 1), ("hd", 4, 1), ("cb", 1, 1), ("q2r", 1, 1), ("col", 1, 1), ("tmp", 2, 2)]:
    alloc(nm, n, al)
K2_VGPRS = _n[0]
assert K2_VGPRS <= 256

S_B, S_P, S_WS, S_H, S_OUT, S_WE, S_T = 24, 28, 32, 36, 40, 44, 48
S_TS = 52
S_BIN, S_W, S_RND, S_FLAG = 60, 61, 62, 63
S_MASK = 64
S_NT, S_G, S_GL, S_FL, S_SLOT, S_T0 = 96, 97, 98, 99, 100, 101
S_C = 4
S_BASEN, S_REM = 12, 13
S_SO = 14
S_NB = 18
S_X = 19
S_Y = 20
S_Z = 21
S_FM = 22

def silu_list(src, m):
    T = V.t
    l = []
    for i in range(16): l.append(f"v_exp_f32 v{T+i}, v{src+i}")
    for i in range(8): l.append(f"v_pk_add_f32 v[{T+2*i}:{T+2*i+1}], v[{T+2*i}:{T+2*i+1}], 1.0 op_sel_hi:[1,0]")
    for i in range(16): l.append(f"v_rcp_f32 v{T+i}, v{T+i}")
    for i in range(8): l.append(f"v_pk_mul_f32 v[{T+2*i}:{T+2*i+1}], v[{T+2*i}:{T+2*i+1}], v[{src+2*i}:{src+2*i+1}]")
    for i in range(8): l.append(f"v_cvt_pk_bf16_f32 v{m+i}, v{T+2*i}, v{T+2*i+1}")
    return l

def weave(a, base, ins):
    for i, x in enumerate(base):
        for y in ins.get(i, []):
            a(y)
        a(x)
    for y in ins.get(len(base), []):
        a(y)

def mfma(d, x, y, c=None):
    c = f"v[{d}:{d+15}]" if c is None else c
    return f"v_mfma_f32_32x32x16_bf16 v[{d}:{d+15}], v[{x}:{x+3}], v[{y}:{y+3}], {c}"

def wxq(blk, s):
    return V.wx + blk * 8 + s * 4

SAFE = False
def row_loads(g):
    pre = (lambda i: f"v_and_b32 v{V.ofs+i}, 0xfffc, v{V.ofs+i}\n") if SAFE else (lambda i: "")
    return [pre(i) + f"buffer_load_dword v{g+i}, v{V.ofs+i}, s[{S_B}:{S_B+3}], 0 offen" for i in range(16)]
def ofs_reads(off):
    return [f"ds_read_b128 v[{V.ofs+4*j}:{V.ofs+4*j+3}], v{V.ofsa} offset:{L_ROFF + off + 32*j}" for j in range(4)]
def x_reads(tile):
    return [f"ds_read_b128 v[{V.x}:{V.x+3}], v{V.xa0} offset:{tile*2048}",
            f"ds_read_b128 v[{V.x+4}:{V.x+7}], v{V.xa1} offset:{tile*2048}"]
def sel_reads(tile):
    r = []
    for s in range(2):
        for jj in range(2):
            d = V.sel + 4*s + 2*jj
            r.append(f"ds_read_b64_tr_b16 v[{d}:{d+1}], v{V.tra0 if jj == 0 else V.tra1} offset:{tile*2048 + s*1024}")
    return r
def s2_mfmas():
    return [mfma(V.a0, V.m0, V.sel), mfma(V.a1, V.m1, V.sel), mfma(V.a0, V.m0+4, V.sel+4), mfma(V.a1, V.m1+4, V.sel+4)]
def x1_mfmas(g):
    return [mfma(g, V.x, wxq(1, 0)), mfma(g, V.x+4, wxq(1, 1))]
def sel_mfmas(g):
    return [mfma(V.d0, V.asel + 4*j, g + 4*j, "0" if j == 0 else None) for j in range(4)]
def x0_mfmas():
    return [mfma(V.d0, V.x, wxq(0, 0)), mfma(V.d0, V.x+4, wxq(0, 1))]
def prep_math():
    ps, pd = V.ps, V.pd
    return [f"v_pk_add_f32 v[{pd}:{pd+1}], v[{pd}:{pd+1}], v[{ps}:{ps+1}] neg_lo:[0,1] neg_hi:[0,1]",
            f"v_sub_f32 v{pd+2}, v{pd+2}, v{ps+2}",
            f"v_mul_f32 v{V.d2}, v{pd}, v{pd}",
            f"v_cvt_pk_bf16_f32 v{V.s}, 1.0, v{pd}",
            f"v_fmac_f32 v{V.d2}, v{pd+1}, v{pd+1}",
            f"v_cvt_pk_bf16_f32 v{V.s+1}, v{pd+1}, v{pd+2}",
            f"v_fmac_f32 v{V.d2}, v{pd+2}, v{pd+2}",
            f"v_cvt_pk_bf16_f32 v{V.w}, v{V.d2}, v{V.rec+1}"]
def img_writes(zero_old=True):
    r = []
    if zero_old:
        r.append(f"ds_write_b64 v{V.sa}, v[{V.z}:{V.z+1}]")
    r += [f"v_xor_b32_sdwa v{V.sa}, v{V.rowb}, v{V.rec+1} dst_sel:DWORD dst_unused:UNUSED_PAD src0_sel:DWORD src1_sel:BYTE_0",
          f"ds_write_b64 v{V.sa}, v[{V.s}:{V.s+1}]",
          f"ds_write2_b32 v{V.wa}, v{V.w}, v{V.w} offset0:0 offset1:1"]
    return r
def rec_read():
    return f"ds_read2st64_b32 v[{V.rec}:{V.rec+1}], v{V.reca} offset0:{ST0} offset1:{ST64}"
def pos_fetch():
    return [f"buffer_load_dwordx3 v[{V.ps}:{V.ps+2}], v{V.rec}, s[{S_P}:{S_P+3}], 0 idxen",
            f"v_lshlrev_b32_sdwa v{V.d2}, 4, v{V.rec+1} dst_sel:DWORD dst_unused:UNUSED_PAD src0_sel:DWORD src1_sel:BYTE_1",
            f"ds_read_b128 v[{V.pd}:{V.pd+3}], v{V.d2} offset:{L_PD}"]
def wx_reads():
    r = []
    for blk in range(2):
        for s in range(2):
            for rr in range(2):
                r.append(f"ds_read_b32 v{wxq(blk, s) + 2*rr}, v{V.ata} offset:{s*1024 + rr*256 + blk*128}")
    return r

def emit_flush(a):
    for blk in range(2):
        for jj in range(4):
            d = (V.t if blk == 0 else V.d0) + 4*jj
            a(f"ds_read_b128 v[{d}:{d+3}], v{V.wxa} offset:{blk*128 + jj*32}")
    a(f"v_add_u32 v{V.tmp}, s{S_SLOT}, v{V.fa}")
    a(f"v_add_u32 v{V.tmp+1}, s{S_SLOT}, v{V.l4}")
    a(f"s_mov_b64 exec, s[{S_FM}:{S_FM+1}]")
    for blk in range(2):
        for jj in range(4):
            d = (V.a0 if blk == 0 else V.a1) + 4*jj
            a(f"ds_write_b128 v{V.tmp}, v[{d}:{d+3}] offset:{blk*128 + jj*32}")
    a("s_mov_b64 exec, -1")
    a("s_waitcnt lgkmcnt(8)")
    T = V.t
    for i in range(8):
        a(f"v_pk_mul_f32 v[{T+2*i}:{T+2*i+1}], v[{T+2*i}:{T+2*i+1}], v[{V.a0+2*i}:{V.a0+2*i+1}]")
    for i in range(8):
        a(f"v_pk_fma_f32 v[{T+2*i}:{T+2*i+1}], v[{V.d0+2*i}:{V.d0+2*i+1}], v[{V.a1+2*i}:{V.a1+2*i+1}], v[{T+2*i}:{T+2*i+1}]")
    for st in (8, 4, 2):
        for i in range(0, st, 2):
            a(f"v_pk_add_f32 v[{T+i}:{T+i+1}], v[{T+i}:{T+i+1}], v[{T+i+st}:{T+i+st+1}]")
    a(f"v_add_f32 v{T}, v{T}, v{T+1}")
    a(f"ds_write_b32 v{V.tmp+1}, v{T} offset:1792")
    a(mfma(V.a0, V.z, V.z, "0"))
    a(mfma(V.a1, V.z, V.z, "0"))

def emit_checks(a, tag):
    a(f"""
s_cmp_eq_u32 s{S_FL}, 0
s_cbranch_scc1 K2_NOFL{tag}
""")
    emit_flush(a)
    a(f"""
s_lshl_b32 s{S_SLOT}, s{S_G}, 11
s_add_u32 s{S_SLOT}, s{S_SLOT}, {L_MS}
s_mov_b32 s{S_FL}, 0
K2_NOFL{tag}:
s_sub_u32 s{S_GL}, s{S_GL}, 1
s_cmp_lg_u32 s{S_GL}, 0
s_cbranch_scc1 K2_NOADV{tag}
s_mov_b32 s{S_FL}, 1
K2_ADV{tag}:
s_cmp_ge_u32 s{S_G}, 6
s_cbranch_scc1 K2_NOADV{tag}
s_add_u32 s{S_G}, s{S_G}, 1
s_mov_b32 m0, s{S_G}
s_nop 0
s_movrels_b32 s{S_X}, s{S_TS}
s_movrels_b32 s{S_GL}, s{S_TS+1}
s_sub_u32 s{S_GL}, s{S_GL}, s{S_X}
s_cmp_eq_u32 s{S_GL}, 0
s_cbranch_scc1 K2_ADV{tag}
s_lshl_b32 s{S_X}, s{S_G}, 11
v_add_u32 v{V.ata}, s{S_X}, v{V.atb}
""")
    for x in wx_reads():
        a(x)
    a(f"K2_NOADV{tag}:")

def gen_k2(a):
    v = V
    a(f"""
.globl egnn_main_kernel
.p2align 8
.type egnn_main_kernel,@function
egnn_main_kernel:
s_cmp_ge_u32 s2, 256
s_cbranch_scc1 K2_END
s_load_dwordx16 s[4:19], s[0:1], 0
s_load_dwordx2 s[20:21], s[0:1], 64
s_load_dwordx2 s[22:23], s[0:1], 80
v_lshrrev_b32 v{v.tmp}, 6, v0
v_and_b32 v{v.lane}, 63, v0
v_readfirstlane_b32 s{S_W}, v{v.tmp}
s_and_b32 s{S_BIN}, s2, 7
s_lshl_b32 s{S_BIN}, s{S_BIN}, 5
s_lshr_b32 s3, s2, 3
s_add_u32 s{S_BIN}, s{S_BIN}, s3
s_mov_b32 s{S_RND}, 0
""")
    L = v.lane
    t0, t1 = v.t, v.t + 1
    h, c31 = v.t + 2, v.t + 3
    sg = v.t + 4
    a(f"""
v_lshrrev_b32 v{h}, 5, v{L}
v_and_b32 v{c31}, 31, v{L}
v_lshrrev_b32 v{sg}, 3, v{L}
v_and_b32 v{t0}, 7, v{L}
v_lshlrev_b32 v{v.q2r}, 1, v{t0}
v_mul_u32_u24 v{v.cb}, {CHP*8}, v{sg}
v_lshl_add_u32 v{v.cb}, v{t0}, 4, v{v.cb}
v_lshlrev_b32 v{sg}, 10, v{sg}
v_lshlrev_b32 v{v.l4}, 2, v{L}
v_mov_b32 v{v.z}, 0
v_mov_b32 v{v.z+1}, 0
v_mov_b32 v{v.z+2}, 0
v_mov_b32 v{v.z+3}, 0
s_lshl_b32 s3, s{S_W}, 12
s_add_u32 s3, s3, {L_IMG}
v_lshl_add_u32 v{t0}, v{L}, 4, s3
v_lshlrev_b32 v{v.col}, 2, v{c31}
v_add_u32 v{v.col}, {L_CNT}, v{v.col}
""")
    for i in range(4):
        a(f"ds_write_b128 v{t0}, v[{v.z}:{v.z+3}] offset:{i*1024}")
    a(f"""
s_lshl_b32 s{S_NT}, s{S_W}, 7
v_add_u32 v{t1}, s{S_NT}, v{v.col}
ds_write_b32 v{t1}, v{v.z}
s_lshl_b32 s{S_G}, s{S_W}, 15
s_lshl_b32 s{S_GL}, s{S_BIN}, 2
s_add_u32 s{S_G}, s{S_G}, s{S_GL}
s_add_u32 s{S_G}, s{S_G}, {WS_H}
s_add_u32 s{S_GL}, s{S_G}, 8192
s_add_u32 s{S_FL}, s{S_G}, 16384
s_add_u32 s{S_SLOT}, s{S_G}, 24576
s_waitcnt lgkmcnt(0)
""")
    srd(a, S_WS, 22, WS_END)
    for k, s in enumerate((S_G, S_GL, S_FL, S_SLOT)):
        a(f"buffer_load_dword v{v.hd+k}, v{sg}, s[{S_WS}:{S_WS+3}], s{s} offen")
    srd(a, S_WE, 14, 130 * 128)
    srd(a, S_T, 18, 128 * 128)
    srd(a, S_H, 4, N * 128)
    wd = v.d0
    a(f"""
v_lshlrev_b32 v{t0}, 4, v{L}
s_lshl_b32 s{S_NT}, s{S_W}, 10
s_add_u32 m0, s{S_NT}, {L_W1}
v_lshlrev_b32 v{t1}, 1, v{c31}
buffer_load_dwordx4 v{t0}, s[{S_WE}:{S_WE+3}], s{S_NT} offen lds
s_mov_b32 s{S_GL}, 16384
s_add_u32 m0, s{S_NT}, {L_WH}
buffer_load_ushort v{wd}, v{t1}, s[{S_WE}:{S_WE+3}], s{S_GL} offen
buffer_load_ushort v{wd+1}, v{t1}, s[{S_WE}:{S_WE+3}], s{S_GL} offen offset:128
buffer_load_ushort v{wd+2}, v{t1}, s[{S_WE}:{S_WE+3}], s{S_GL} offen offset:64
buffer_load_ushort v{wd+3}, v{t1}, s[{S_WE}:{S_WE+3}], s{S_GL} offen offset:192
buffer_load_dwordx4 v{t0}, s[{S_T}:{S_T+3}], s{S_NT} offen lds
s_add_u32 s{S_NT}, s{S_NT}, 8192
s_add_u32 m0, s{S_NT}, {L_WH}
s_mul_i32 s3, s{S_BIN}, 49
buffer_load_dwordx4 v{t0}, s[{S_T}:{S_T+3}], s{S_NT} offen lds
""")
    srd(a, S_B, 22, WS_END, w3="0x00C00000", w1or="0x80000000")
    srd(a, S_P, 22, 4 * 12544, w1or="0x40000", add=WS_P)
    srd(a, S_OUT, 20, OUT_BYTES)
    nrow = v.tmp
    hf = v.ga
    a(f"""
s_mov_b32 s{S_NB}, s3
s_cmp_ge_u32 s{S_W}, 4
s_cbranch_scc1 K2_ROLE4
s_lshr_b32 s3, s{S_W}, 1
s_mul_i32 s3, s3, 28
s_add_u32 s3, s3, s{S_NB}
s_lshl_b32 s3, s3, 7
v_lshrrev_b32 v{t0}, 3, v{c31}
v_sub_u32 v{t0}, v{c31}, v{t0}
v_lshlrev_b32 v{t0}, 7, v{t0}
v_lshl_add_u32 v{t0}, v{h}, 4, v{t0}
""")
    for s in range(4):
        a(f"buffer_load_dwordx4 v[{hf+4*s}:{hf+4*s+3}], v{t0}, s[{S_H}:{S_H+3}], s3 offen offset:{32*s}")
    a(f"""
s_waitcnt vmcnt(11)
s_branch K2_ROLED
K2_ROLE4:
s_cmp_ge_u32 s{S_W}, 6
s_cbranch_scc1 K2_ROLE6
s_cmp_eq_u32 s{S_W}, 5
s_cbranch_scc1 K2_ROLE5
v_lshrrev_b32 v{t0}, 3, v{L}
v_sub_u32 v{t0}, v{L}, v{t0}
v_add_u32 v{t0}, s{S_NB}, v{t0}
v_lshlrev_b32 v{t0}, 2, v{t0}
buffer_load_dwordx4 v[{hf}:{hf+3}], v{t0}, s[{S_P}:{S_P+3}], 0 idxen
s_waitcnt vmcnt(8)
s_branch K2_ROLED
K2_ROLE5:
""")
    srd(a, S_T, 16, 128)
    a(f"""
v_lshlrev_b32 v{t0}, 1, v{L}
buffer_load_ushort v{hf}, v{t0}, s[{S_T}:{S_T+3}], 0 offen
s_waitcnt vmcnt(8)
s_branch K2_ROLED
K2_ROLE6:
s_waitcnt vmcnt(7)
K2_ROLED:
s_mul_i32 s{S_SO}, s{S_W}, {32*CHP*8}
s_add_u32 s{S_SO}, s{S_SO}, {WS_R}
s_add_u32 s{S_SO+1}, s{S_SO}, {8*CHP*8}
s_add_u32 s{S_SO+2}, s{S_SO}, {16*CHP*8}
s_add_u32 s{S_SO+3}, s{S_SO}, {24*CHP*8}
s_mov_b32 s{S_FM}, 0x01111111
s_mov_b32 s{S_FM+1}, 0x01111111
K2_ROUND:
""")
    REC = v.a0
    CAD = v.m0
    RNK = v.x
    RAD = v.ofs
    def recreg(k, pp): return REC + (k*2 + pp) * 4
    def idx(k, pp, e): return (k*2 + pp) * 2 + e
    def mask(k, pp, e): return S_MASK + 2 * idx(k, pp, e)
    for k in range(4):
        a(f"v_add_u32_sdwa v{RAD+k}, v{v.cb}, v{v.hd+k} dst_sel:DWORD dst_unused:UNUSED_PAD src0_sel:DWORD src1_sel:WORD_0")
        a(f"v_sub_u32_sdwa v{RAD+4+k}, v{v.hd+k}, v{v.q2r} dst_sel:DWORD dst_unused:UNUSED_PAD src0_sel:WORD_1 src1_sel:DWORD")
    for k in range(4):
        a(f"v_cmp_lt_i32 s[{mask(k,0,0)}:{mask(k,0,0)+1}], 0, v{RAD+4+k}")
    for k in range(4):
        a(f"v_cmp_lt_i32 s[{mask(k,1,0)}:{mask(k,1,0)+1}], 16, v{RAD+4+k}")
    for pp in range(2):
        for k in range(4):
            a(f"s_mov_b64 exec, s[{mask(k,pp,0)}:{mask(k,pp,0)+1}]")
            a(f"buffer_load_dwordx4 v[{recreg(k,pp)}:{recreg(k,pp)+3}], v{RAD+k}, s[{S_WS}:{S_WS+3}], s{S_SO+k} offen offset:{pp*128}")
    a("s_mov_b64 exec, -1")
    for k in range(4):
        a(f"v_cmp_lt_i32 s[{mask(k,0,1)}:{mask(k,0,1)+1}], 1, v{RAD+4+k}")
        a(f"v_cmp_lt_i32 s[{mask(k,1,1)}:{mask(k,1,1)+1}], 17, v{RAD+4+k}")
    a(f"""
v_max_i32 v{RAD+4}, v{RAD+4}, v{RAD+5}
v_max3_i32 v{RAD+4}, v{RAD+4}, v{RAD+6}, v{RAD+7}
s_cmp_lg_u32 s{S_RND}, 0
s_cbranch_scc1 K2_R1
""")
    a(f"""
v_lshlrev_b32 v{t0}, 2, v{h}
v_sub_u32 v{t0}, v{c31}, v{t0}
v_lshlrev_b32 v{t0}, v{t0}, 1
""".replace(f"v_lshlrev_b32 v{t0}, v{t0}, 1", f"v_mov_b32 v{t1}, 1\nv_lshlrev_b32 v{t0}, v{t0}, v{t1}"))
    for jj in range(4):
        for r in range(4):
            a(f"v_bfe_i32 v{v.asel+4*jj+r}, v{t0}, {8*jj+r}, 1")
    for i in range(16):
        a(f"v_and_b32 v{v.asel+i}, 0x3f80, v{v.asel+i}")
    a(f"""
s_lshl_b32 s3, s{S_W}, 12
s_add_u32 s3, s3, {L_IMG}
v_bfe_u32 v{t0}, v{L}, 2, 2
v_lshlrev_b32 v{t0}, 4, v{t0}
v_lshl_add_u32 v{v.rowb}, v{L}, 6, v{t0}
v_add_u32 v{v.rowb}, s3, v{v.rowb}
v_xor_b32 v{v.wa}, 56, v{v.rowb}
v_lshl_add_u32 v{v.xa0}, v{c31}, 6, v{t0}
v_lshlrev_b32 v{t1}, 4, v{h}
v_xor_b32 v{v.xa0}, v{v.xa0}, v{t1}
v_add_u32 v{v.xa0}, s3, v{v.xa0}
v_xor_b32 v{v.xa1}, 32, v{v.xa0}
v_add_u32 v{v.wxa}, {L_WXT}, v{t1}
v_lshrrev_b32 v{v.fa}, 2, v{c31}
v_lshl_add_u32 v{v.fa}, v{v.fa}, 8, v{t1}
v_lshlrev_b32 v{v.atb}, 9, v{h}
v_lshl_add_u32 v{v.atb}, v{c31}, 2, v{v.atb}
v_add_u32 v{v.atb}, {L_AT}, v{v.atb}
""")
    ta, tb = v.t + 5, v.t + 6
    a(f"""
v_bfe_u32 v{ta}, v{L}, 2, 2
v_lshl_add_u32 v{ta}, v{h}, 2, v{ta}
v_lshlrev_b32 v{ta}, 6, v{ta}
v_bfe_u32 v{tb}, v{L}, 4, 1
v_lshlrev_b32 v{tb}, 5, v{tb}
v_and_b32 v{t0}, 3, v{L}
v_lshl_add_u32 v{tb}, v{t0}, 3, v{tb}
v_xor_b32 v{t0}, v{tb}, v{t1}
v_add3_u32 v{v.tra0}, v{ta}, v{t0}, s3
v_xor_b32 v{v.tra1}, 32, v{v.tra0}
v_add_u32 v{v.tra1}, 512, v{v.tra1}
""")
    a(f"""
v_bfe_u32 v{ta}, v{L}, 2, 2
v_lshl_add_u32 v{ta}, v{h}, 3, v{ta}
v_lshl_add_u32 v{ta}, v{ta}, 7, v{tb}
s_and_b32 s3, s{S_W}, 1
s_lshl_b32 s3, s3, 6
v_add_u32 v{v.d2}, s3, v{ta}
""")
    for i in range(8):
        a(f"v_mov_b32 v{v.ra+i}, 0")
    a(f"v_mov_b32 v{v.rp}, 0")
    for blk in range(2):
        a(f"v_mov_b32 v{wxq(blk,0)+1}, 0\nv_mov_b32 v{wxq(blk,0)+3}, 0\nv_mov_b32 v{wxq(blk,1)+1}, 0")
    a(f"s_mov_b32 s3, {f2u(SCALE):#x}")
    a("s_waitcnt vmcnt(8)")
    a("s_barrier")
    HI = v.d0 + 4
    for blk in range(2):
        d, e = wd + 2*blk, wd + 2*blk + 1
        a(f"""
v_lshlrev_b32 v{d}, 16, v{d}
v_lshlrev_b32 v{e}, 16, v{e}
v_mul_f32 v{d}, s3, v{d}
v_mul_f32 v{e}, s3, v{e}
v_cvt_pk_bf16_f32 v{HI+blk}, v{d}, v{e}
v_lshlrev_b32 v{t0}, 16, v{HI+blk}
v_and_b32 v{t1}, 0xffff0000, v{HI+blk}
v_sub_f32 v{d}, v{d}, v{t0}
v_sub_f32 v{e}, v{e}, v{t1}
v_cvt_pk_bf16_f32 v{t0}, v{d}, v{e}
v_mul_u32_u24 v{t1}, 0, v{t0}
v_sub_u32 v{t1}, 0, v{h}
v_and_b32 v{wxq(blk,1)+3}, v{t0}, v{t1}
""".replace(f"v_mul_u32_u24 v{t1}, 0, v{t0}\n", ""))
    WF = v.gb
    a(f"""
s_cmp_ge_u32 s{S_W}, 4
s_cbranch_scc1 K2_RC4
v_add_u32 v{t0}, {L_W1}, v{v.d2}
""")
    for s in range(4):
        for u in range(2):
            a(f"ds_read_b64_tr_b16 v[{WF+4*s+2*u}:{WF+4*s+2*u+1}], v{t0} offset:{(16*s+4*u)*128}")
    AD = v.t
    return_regs = None
    AD = RNK
    a(f"""
s_and_b32 s{S_X}, s{S_W}, 1
s_cmp_eq_u32 s{S_X}, 0
s_cbranch_scc1 K2_HI0
v_mov_b32 v{HI}, v{HI+1}
K2_HI0:
s_lshr_b32 s{S_Y}, s{S_W}, 1
s_lshl_b32 s{S_Y}, s{S_Y}, 13
s_lshl_b32 s{S_X}, s{S_X}, 7
s_add_u32 s{S_X}, s{S_X}, s{S_Y}
s_add_u32 s{S_X}, s{S_X}, {L_AT}
v_lshlrev_b32 v{t0}, 10, v{h}
v_lshl_add_u32 v{t0}, v{c31}, 2, v{t0}
v_add_u32 v{t0}, s{S_X}, v{t0}
s_waitcnt lgkmcnt(0)
""")
    for s in range(4):
        a(mfma(AD, hf + 4*s, WF + 4*s, "0" if s == 0 else None))
    a("s_nop 15")
    for i in range(16):
        a(f"v_mul_f32 v{AD+i}, s3, v{AD+i}")
    for i in range(16):
        a(f"v_cvt_pk_bf16_f32 v{AD+i}, v{AD+i}, 0")
    a("s_mov_b32 exec_lo, 0")
    for jj in range(4):
        a(f"v_mov_b32 v{AD+4*jj+3}, v{HI}")
    a("s_mov_b64 exec, -1")
    for i in range(12):
        a(f"ds_write_b32 v{t0}, v{AD+i} offset:{(i//4)*2048 + (i%4)*256}")
    a(f"s_cmp_ge_u32 s{S_W}, 2\ns_cbranch_scc1 K2_RCD")
    for i in range(12, 16):
        a(f"ds_write_b32 v{t0}, v{AD+i} offset:{(i//4)*2048 + (i%4)*256}")
    a(f"""
s_branch K2_RCD
K2_RC4:
s_cmp_ge_u32 s{S_W}, 6
s_cbranch_scc1 K2_RCD
s_cmp_eq_u32 s{S_W}, 5
s_cbranch_scc1 K2_RC5
v_lshlrev_b32 v{t0}, 4, v{L}
v_add_u32 v{t0}, {L_PD}, v{t0}
ds_write_b128 v{t0}, v[{hf}:{hf+3}]
s_branch K2_RCD
K2_RC5:
v_lshlrev_b32 v{hf}, 16, v{hf}
v_add_u32 v{t0}, {L_WXT}, v{v.l4}
ds_write_b32 v{t0}, v{hf}
s_branch K2_RCD
K2_R1:
s_waitcnt lgkmcnt(0)
s_barrier
K2_RCD:
v_cmp_lt_i32 vcc, 32, v{RAD+4}
v_mov_b32 v{t1}, 1
v_mov_b32 v{t0}, {L_CNT + 896}
s_and_b64 exec, exec, vcc
ds_write_b32 v{t0}, v{t1}
s_mov_b64 exec, -1
""")
    n = 0
    for pp in range(2):
        for k in range(4):
            a(f"s_waitcnt vmcnt({7 - n})")
            n += 1
            for e in range(2):
                i = idx(k, pp, e)
                a(f"v_bfe_u32 v{CAD+i}, v{recreg(k,pp)+2*e+1}, 11, 3")
                a(f"v_lshl_add_u32 v{CAD+i}, v{CAD+i}, 7, v{v.col}")
            for e in range(2):
                i = idx(k, pp, e)
                a(f"s_mov_b64 exec, s[{mask(k,pp,e)}:{mask(k,pp,e)+1}]")
                a(f"ds_add_rtn_u32 v{RNK+i}, v{CAD+i}, v{t1}")
            a("s_mov_b64 exec, -1")
    cc = v.d0
    a(f"""
v_lshrrev_b32 v{t0}, 5, v{L}
v_lshl_add_u32 v{t0}, v{t0}, 9, v{v.col}
s_waitcnt lgkmcnt(0)
s_barrier
""")
    for i in range(4):
        a(f"ds_read_b32 v{cc+i}, v{t0} offset:{i*128}")
    a(f"""
s_waitcnt lgkmcnt(0)
v_lshl_or_b32 v{cc+4}, v{cc+1}, 16, v{cc}
v_lshl_or_b32 v{cc+5}, v{cc+3}, 16, v{cc+2}
v_mov_b32 v{cc+6}, v{cc+4}
v_mov_b32 v{cc+7}, v{cc+5}
""")
    dpp_scan(a, [cc+6, cc+7], False)
    a(f"""
v_readlane_b32 s{S_C+1}, v{cc+6}, 31
v_readlane_b32 s{S_C+3}, v{cc+7}, 31
v_readlane_b32 s{S_C+5}, v{cc+6}, 63
v_readlane_b32 s{S_C+7}, v{cc+7}, 63
v_sub_u32 v{cc+6}, v{cc+6}, v{cc+4}
v_sub_u32 v{cc+7}, v{cc+7}, v{cc+5}
""")
    for g in range(0, 8, 2):
        a(f"s_and_b32 s{S_C+g}, s{S_C+g+1}, 0xffff")
        a(f"s_lshr_b32 s{S_C+g+1}, s{S_C+g+1}, 16")
    a(f"s_mov_b32 s{S_FLAG}, s{S_C+7}\ns_mov_b32 s{S_C+7}, 0\ns_mov_b32 s{S_TS}, 0")
    for g in range(7):
        a(f"s_add_u32 s3, s{S_C+g}, 31\ns_lshr_b32 s3, s3, 5\ns_add_u32 s{S_TS+g+1}, s{S_TS+g}, s3")
    a(f"""
s_pack_ll_b32_b16 s{S_X}, s{S_TS}, s{S_TS+1}
s_pack_ll_b32_b16 s{S_Y}, s{S_TS+2}, s{S_TS+3}
s_lshl_b32 s{S_X}, s{S_X}, 5
s_lshl_b32 s{S_Y}, s{S_Y}, 5
s_mov_b32 exec_hi, 0
v_add_u32 v{cc+6}, s{S_X}, v{cc+6}
v_add_u32 v{cc+7}, s{S_Y}, v{cc+7}
s_pack_ll_b32_b16 s{S_X}, s{S_TS+4}, s{S_TS+5}
s_lshl_b32 s{S_X}, s{S_X}, 5
s_lshl_b32 s{S_Y}, s{S_TS+6}, 5
s_not_b64 exec, exec
v_add_u32 v{cc+6}, s{S_X}, v{cc+6}
v_add_u32 v{cc+7}, s{S_Y}, v{cc+7}
s_mov_b64 exec, -1
ds_write_b16 v{t0}, v{cc+6} offset:1024
ds_write_b16_d16_hi v{t0}, v{cc+6} offset:{1024+128}
ds_write_b16 v{t0}, v{cc+7} offset:{1024+256}
ds_write_b16_d16_hi v{t0}, v{cc+7} offset:{1024+384}
""")
    for i in range(16):
        a(f"ds_read_u16 v{CAD+i}, v{CAD+i} offset:1024")
    T = S_TS + 7
    a(f"""
s_lshr_b32 s{S_BASEN}, s{T}, 3
s_and_b32 s{S_REM}, s{T}, 7
s_mul_i32 s{S_T0}, s{S_W}, s{S_BASEN}
s_min_u32 s3, s{S_W}, s{S_REM}
s_add_u32 s{S_T0}, s{S_T0}, s3
s_cmp_lt_u32 s{S_W}, s{S_REM}
s_addc_u32 s{S_NT}, s{S_BASEN}, 0
s_mov_b32 s{S_G}, 0
""")
    for i in range(1, 7):
        a(f"s_cmp_ge_u32 s{S_T0}, s{S_TS+i}\ns_cselect_b32 s{S_G}, {i}, s{S_G}")
    a(f"""
s_mov_b32 m0, s{S_G}
s_lshl_b32 s{S_Z}, s{S_G}, 11
s_movrels_b32 s{S_X}, s{S_TS}
s_movrels_b32 s{S_GL}, s{S_TS+1}
s_sub_u32 s{S_GL}, s{S_GL}, s{S_T0}
v_add_u32 v{v.ata}, s{S_Z}, v{v.atb}
s_add_u32 s{S_Z}, s{S_Z}, {L_MS}
s_lshl_b32 s{S_Y}, s{S_W}, 11
s_add_u32 s{S_Y}, s{S_Y}, {L_PS}
s_cmp_gt_u32 s{S_T0}, s{S_X}
s_cselect_b32 s{S_SLOT}, s{S_Y}, s{S_Z}
s_mov_b32 s{S_FL}, 0
s_mov_b32 m0, s{S_W}
s_lshl_b32 s3, s{S_T0}, 7
s_movrels_b32 s{S_X}, s{S_TS}
s_movrels_b32 s{S_Y}, s{S_C}
v_add_u32 v{v.reca}, s3, v{v.l4}
v_lshrrev_b32 v{v.ofsa}, 5, v{L}
v_lshl_add_u32 v{v.ofsa}, v{v.ofsa}, 4, s3
s_lshl_b32 s{S_X}, s{S_X}, 5
s_add_u32 s{S_X}, s{S_X}, s{S_Y}
s_lshl_b32 s{S_X}, s{S_X}, 2
s_sub_u32 s{S_Y}, 0, s{S_Y}
s_and_b32 s{S_Y}, s{S_Y}, 31
s_cmp_eq_u32 s{S_W}, 7
s_cselect_b32 s{S_Y}, 64, s{S_Y}
v_add_u32 v{t0}, s{S_X}, v{v.l4}
v_mov_b32 v{t1}, 0x738
v_cmp_gt_u32 vcc, s{S_Y}, v{L}
s_waitcnt lgkmcnt(0)
""")
    for i in range(16):
        a(f"v_add_lshl_u32 v{CAD+i}, v{CAD+i}, v{RNK+i}, 2")
    for pp in range(2):
        for k in range(4):
            for e in range(2):
                i = idx(k, pp, e)
                a(f"s_mov_b64 exec, s[{mask(k,pp,e)}:{mask(k,pp,e)+1}]")
                a(f"ds_write2st64_b32 v{CAD+i}, v{recreg(k,pp)+2*e}, v{recreg(k,pp)+2*e+1} offset0:{ST0} offset1:{ST64}")
    a(f"""
s_mov_b64 exec, vcc
ds_write2st64_b32 v{t0}, v{v.z}, v{t1} offset0:{ST0} offset1:{ST64}
s_mov_b64 exec, -1
s_cmp_lg_u32 s{S_W}, 7
s_cbranch_scc1 K2_NOPAD2
ds_write2st64_b32 v{t0}, v{v.z}, v{t1} offset0:{ST0+1} offset1:{ST64+1}
K2_NOPAD2:
""")
    for i in range(16):
        a(f"v_mov_b32 v{v.m0+i}, 0")
    for i in range(8):
        a(f"v_mov_b32 v{v.sel+i}, 0")
    a(mfma(v.a0, v.z, v.z, "0"))
    a(mfma(v.a1, v.z, v.z, "0"))
    a(f"""
s_waitcnt lgkmcnt(0)
s_barrier
s_cmp_eq_u32 s{S_NT}, 0
s_cbranch_scc1 K2_DONE
""")
    a(rec_read())
    for x in ofs_reads(0): a(x)
    for x in wx_reads(): a(x)
    a("s_waitcnt lgkmcnt(12)")
    for x in pos_fetch(): a(x)
    a("s_waitcnt lgkmcnt(9)")
    for x in row_loads(v.ga): a(x)
    for x in ofs_reads(128): a(x)
    a(f"v_add_u32 v{v.reca}, 256, v{v.reca}")
    a("s_waitcnt vmcnt(16) lgkmcnt(4)")
    for x in prep_math(): a(x)
    for x in img_writes(False): a(x)
    for x in x_reads(0): a(x)
    for j, x in enumerate(sel_mfmas(v.ga)):
        a(f"s_waitcnt vmcnt({12 - 4*j})")
        a(x)
    a("s_waitcnt lgkmcnt(0)")
    for x in x0_mfmas(): a(x)
    a("s_nop 7\ns_nop 3")
    a(".p2align 3\nK2_LOOP:")
    MP = (4, 8, 12, 24, 28, 32)
    ins = {}
    def add(p, x):
        ins.setdefault(p, []).extend(x if isinstance(x, list) else [x])
    add(0, "s_waitcnt lgkmcnt(0)")
    add(0, rec_read())
    for i, x in enumerate(row_loads(v.gb)): add(i + 1, x)
    for p, x in zip(MP, x1_mfmas(v.ga) + s2_mfmas()): add(p, x)
    weave(a, silu_list(v.d0, v.m0), ins)
    a("s_waitcnt lgkmcnt(0)")
    emit_checks(a, "A")
    ins = {}
    pf = pos_fetch()
    add(0, pf[0]); add(1, pf[1]); add(2, pf[2])
    add(3, x_reads(1)); add(5, sel_reads(0)[:2]); add(6, sel_reads(0)[2:]); add(9, ofs_reads(256)[:2]); add(10, ofs_reads(256)[2:])
    for j, (p, x) in enumerate(zip(MP, sel_mfmas(v.gb) + x0_mfmas())):
        if j < 4: add(p, f"s_waitcnt vmcnt({13 - 4*j})")
        if j == 4: add(p, "s_waitcnt lgkmcnt(8)")
        add(p, x)
    weave(a, silu_list(v.ga, v.m1), ins)
    a(f"""
s_sub_u32 s{S_NT}, s{S_NT}, 1
s_cmp_eq_u32 s{S_NT}, 0
s_cbranch_scc1 K2_DRAIN
""")
    ins = {}
    add(0, "s_waitcnt lgkmcnt(0)")
    for i, x in enumerate(row_loads(v.ga)): add(i + 1, x)
    for p, x in zip(MP, x1_mfmas(v.gb) + s2_mfmas()): add(p, x)
    add(56, "s_waitcnt vmcnt(16)")
    add(56, prep_math())
    add(56, f"v_add_u32 v{v.reca}, 256, v{v.reca}")
    weave(a, silu_list(v.d0, v.m0), ins)
    emit_checks(a, "B")
    ins = {}
    add(0, sel_reads(1)[:2]); add(1, sel_reads(1)[2:])
    iw = img_writes(True)
    add(2, iw[:2]); add(3, iw[2:])
    add(5, x_reads(0)); add(9, ofs_reads(384)[:2]); add(10, ofs_reads(384)[2:])
    add(16, f"v_add_u32 v{v.ofsa}, 256, v{v.ofsa}")
    for j, (p, x) in enumerate(zip(MP, sel_mfmas(v.ga) + x0_mfmas())):
        if j < 4: add(p, f"s_waitcnt vmcnt({12 - 4*j})")
        if j == 4: add(p, "s_waitcnt lgkmcnt(4)")
        add(p, x)
    weave(a, silu_list(v.gb, v.m1), ins)
    a(f"""
s_sub_u32 s{S_NT}, s{S_NT}, 1
s_cmp_lg_u32 s{S_NT}, 0
s_cbranch_scc1 K2_LOOP
K2_DRAIN:
s_waitcnt lgkmcnt(0)
""")
    for x in s2_mfmas(): a(x)
    a("s_nop 15")
    emit_flush(a)
    a("K2_DONE:\ns_waitcnt vmcnt(0)")
    nofs = v.tmp
    a(f"""
s_cmp_ge_u32 s{S_W}, 4
s_cbranch_scc1 K2_EP1
s_lshr_b32 s3, s{S_W}, 1
s_mul_i32 s3, s3, 28
s_add_u32 s3, s3, s{S_NB}
s_lshl_b32 s3, s3, 7
v_and_b32 v{v.w}, 31, v{L}
v_lshrrev_b32 v{v.sa}, 3, v{v.w}
v_sub_u32 v{v.sa}, v{v.w}, v{v.sa}
v_lshlrev_b32 v{v.sa}, 7, v{v.sa}
v_lshrrev_b32 v{v.s}, 5, v{L}
v_lshl_add_u32 v{nofs}, v{v.s}, 4, v{v.sa}
""")
    for s in range(4):
        a(f"buffer_load_dwordx4 v[{v.ga+4*s}:{v.ga+4*s+3}], v{nofs}, s[{S_H}:{S_H+3}], s3 offen offset:{32*s}")
    a(f"""
s_and_b32 s{S_X}, s{S_W}, 1
s_lshl_b32 s{S_X}, s{S_X}, 6
s_add_u32 s{S_Z}, s3, s{S_X}
v_lshl_add_u32 v{nofs}, v{v.s}, 3, v{v.sa}
""")
    for jj in range(4):
        a(f"buffer_load_dwordx2 v[{v.gb+2*jj}:{v.gb+2*jj+1}], v{nofs}, s[{S_H}:{S_H+3}], s{S_Z} offen offset:{16*jj}")
    a(f"""
v_bfe_u32 v{v.ps}, v{L}, 2, 2
v_lshl_add_u32 v{v.ps}, v{v.s}, 3, v{v.ps}
v_lshlrev_b32 v{v.ps}, 7, v{v.ps}
v_bfe_u32 v{v.ps+1}, v{L}, 4, 1
v_lshl_add_u32 v{v.ps}, v{v.ps+1}, 5, v{v.ps}
v_and_b32 v{v.ps+1}, 3, v{L}
v_lshl_add_u32 v{v.ps}, v{v.ps+1}, 3, v{v.ps}
s_add_u32 s{S_X}, s{S_X}, {L_WH}
v_add_u32 v{v.ps}, s{S_X}, v{v.ps}
s_nop 7
""")
    for s in range(8):
        for u in range(2):
            d = v.a0 + 4*s + 2*u
            a(f"ds_read_b64_tr_b16 v[{d}:{d+1}], v{v.ps} offset:{(16*s+4*u)*128}")
    a("s_waitcnt vmcnt(4) lgkmcnt(0)")
    for s in range(4):
        a(mfma(v.d0, v.a0 + 4*s, v.ga + 4*s, "0" if s == 0 else None))
    a(f"""
K2_EP1:
s_waitcnt lgkmcnt(0)
s_barrier
s_cmp_eq_u32 s{S_W}, 7
s_cbranch_scc1 K2_COMBD
s_mov_b32 m0, s{S_W}
v_lshrrev_b32 v{v.rec}, 3, v{L}
v_and_b32 v{v.rec+1}, 7, v{L}
v_lshlrev_b32 v{v.rec+1}, 5, v{v.rec+1}
v_lshl_add_u32 v{v.rec}, v{v.rec}, 8, v{v.rec+1}
v_and_b32 v{v.rec+1}, 31, v{L}
v_lshlrev_b32 v{v.rec+1}, 2, v{v.rec+1}
v_add_u32 v{v.rec+1}, 1792, v{v.rec+1}
s_movrels_b32 s{S_X}, s{S_TS}
s_movrels_b32 s{S_Y}, s{S_TS+1}
s_cmp_eq_u32 s{S_X}, s{S_Y}
s_cbranch_scc1 K2_COMBD
s_lshl_b32 s{S_SLOT}, s{S_W}, 11
s_add_u32 s{S_SLOT}, s{S_SLOT}, {L_MS}
s_mov_b32 s{S_G}, 0
K2_COMB:
v_add_u32 v{v.pd}, s{S_SLOT}, v{v.rec}
v_add_u32 v{v.pd+1}, s{S_SLOT}, v{v.rec+1}
ds_read_b128 v[{v.t}:{v.t+3}], v{v.pd}
ds_read_b128 v[{v.t+4}:{v.t+7}], v{v.pd} offset:16
ds_read2_b32 v[{v.t+8}:{v.t+9}], v{v.pd+1} offset0:0 offset1:32
s_waitcnt lgkmcnt(0)
""")
    for i in range(4):
        a(f"v_pk_add_f32 v[{v.ra+2*i}:{v.ra+2*i+1}], v[{v.ra+2*i}:{v.ra+2*i+1}], v[{v.t+2*i}:{v.t+2*i+1}]")
    a(f"""
v_add_f32 v{v.rp}, v{v.rp}, v{v.t+8}
v_add_f32 v{v.rp}, v{v.rp}, v{v.t+9}
K2_COMBN:
s_add_u32 s{S_G}, s{S_G}, 1
s_cmp_ge_u32 s{S_G}, 8
s_cbranch_scc1 K2_COMBD
s_mul_i32 s{S_T0}, s{S_G}, s{S_BASEN}
s_min_u32 s3, s{S_G}, s{S_REM}
s_add_u32 s{S_T0}, s{S_T0}, s3
s_cmp_le_u32 s{S_T0}, s{S_X}
s_cbranch_scc1 K2_COMBN
s_cmp_ge_u32 s{S_T0}, s{S_Y}
s_cbranch_scc1 K2_COMBD
s_lshl_b32 s{S_SLOT}, s{S_G}, 11
s_add_u32 s{S_SLOT}, s{S_SLOT}, {L_PS}
s_branch K2_COMB
K2_COMBD:
s_cmp_eq_u32 s{S_FLAG}, 0
s_cbranch_scc1 K2_FINAL
s_add_u32 s{S_RND}, s{S_RND}, 1
s_cmp_ge_u32 s{S_RND}, 100
s_cbranch_scc1 K2_FINAL
v_add_u32 v{v.q2r}, 32, v{v.q2r}
""")
    for k in range(4):
        a(f"s_add_u32 s{S_SO+k}, s{S_SO+k}, 256")
    a(f"""
s_lshl_b32 s3, s{S_W}, 12
s_add_u32 s3, s3, {L_IMG}
v_lshl_add_u32 v{t0}, v{L}, 4, s3
""")
    for i in range(4):
        a(f"ds_write_b128 v{t0}, v[{v.z}:{v.z+3}] offset:{i*1024}")
    a(f"""
s_lshl_b32 s3, s{S_W}, 7
v_add_u32 v{t1}, s3, v{v.col}
ds_write_b32 v{t1}, v{v.z}
s_waitcnt vmcnt(0)
s_branch K2_ROUND
K2_FINAL:
s_mov_b32 s3, {f2u(UNSCALE):#x}
s_cmp_eq_u32 s{S_W}, 7
s_cbranch_scc1 K2_FIN1
""")
    for i in range(8):
        a(f"v_mul_f32 v{v.ra+i}, s3, v{v.ra+i}")
    for i in range(4):
        a(f"v_cvt_pk_bf16_f32 v{v.t+i}, v{v.ra+2*i}, v{v.ra+2*i+1}")
    a(f"""
s_mul_i32 s{S_X}, s{S_W}, {8*XSTR}
s_add_u32 s{S_X}, s{S_X}, {L_X}
v_lshrrev_b32 v{v.pd}, 3, v{L}
v_mul_u32_u24 v{v.pd}, {XSTR}, v{v.pd}
v_and_b32 v{v.pd+1}, 7, v{L}
v_lshl_add_u32 v{v.pd}, v{v.pd+1}, 4, v{v.pd}
v_add_u32 v{v.pd}, s{S_X}, v{v.pd}
ds_write_b128 v{v.pd}, v[{v.t}:{v.t+3}]
s_lshl_b32 s{S_X}, s{S_W}, 7
s_add_u32 s{S_X}, s{S_X}, {L_PD - 4}
v_add_u32 v{v.pd}, s{S_X}, v{v.l4}
ds_read_b32 v{v.t+4}, v{v.pd}
s_mul_i32 s{S_X}, s{S_W}, 7
s_add_u32 s{S_X}, s{S_X}, s{S_NB}
s_sub_u32 s{S_Y}, {N}, s{S_X}
s_mul_i32 s{S_X}, s{S_X}, 6
s_add_u32 s{S_X}, s{S_X}, {OUT_POS - 2}
v_lshrrev_b32 v{v.pd+1}, 2, v{L}
v_cmp_gt_i32 vcc, s{S_Y}, v{v.pd+1}
v_sub_u32 v{v.pd+1}, v{L}, v{v.pd+1}
v_lshlrev_b32 v{v.pd+1}, 1, v{v.pd+1}
v_lshrrev_b32 v{v.pd+2}, 2, v{L}
v_lshl_add_u32 v{v.pd+1}, v{v.pd+2}, 1, v{v.pd+1}
""".replace(f"v_lshrrev_b32 v{v.pd+2}, 2, v{L}\nv_lshl_add_u32 v{v.pd+1}, v{v.pd+2}, 1, v{v.pd+1}\n", ""))
    a(f"""
s_and_b64 exec, vcc, 0x0eeeeeee
s_waitcnt lgkmcnt(0)
v_fmac_f32 v{v.t+4}, s3, v{v.rp}
v_cvt_pk_bf16_f32 v{v.t+4}, v{v.t+4}, v{v.t+4}
buffer_store_short v{v.t+4}, v{v.pd+1}, s[{S_OUT}:{S_OUT+3}], s{S_X} offen
s_mov_b64 exec, -1
K2_FIN1:
s_waitcnt lgkmcnt(0)
s_barrier
s_cmp_ge_u32 s{S_W}, 4
s_cbranch_scc1 K2_END
s_lshr_b32 s{S_X}, s{S_W}, 1
s_mul_i32 s{S_Y}, s{S_X}, {32*XSTR}
s_add_u32 s{S_Y}, s{S_Y}, {L_X}
v_mul_u32_u24 v{v.pd}, {XSTR}, v{v.w}
v_lshl_add_u32 v{v.pd}, v{v.s}, 4, v{v.pd}
v_add_u32 v{v.pd}, s{S_Y}, v{v.pd}
""")
    for s in range(4):
        a(f"ds_read_b128 v[{v.ga+4*s}:{v.ga+4*s+3}], v{v.pd} offset:{32*s}")
    a(f"""
s_mul_i32 s{S_Y}, s{S_X}, 28
s_add_u32 s{S_Y}, s{S_Y}, s{S_NB}
s_sub_u32 s{S_Y}, {N}, s{S_Y}
v_lshrrev_b32 v{v.pd+1}, 7, v{v.sa}
v_cmp_gt_i32 vcc, s{S_Y}, v{v.pd+1}
s_mov_b32 s{S_FM}, 0x7f7f7f7f
s_cmp_eq_u32 s{S_X}, 0
s_cselect_b32 s{S_FM}, s{S_FM}, 0x007f7f7f
s_mov_b32 s{S_FM+1}, s{S_FM}
s_and_b64 s[{S_FM}:{S_FM+1}], s[{S_FM}:{S_FM+1}], vcc
s_mov_b32 s3, {f2u(SCALE):#x}
""")
    for s in range(4):
        a(f"s_waitcnt lgkmcnt({3-s})")
        a(mfma(v.d0, v.a1 + 4*s, v.ga + 4*s))
    a("s_nop 15")
    T_ = v.t
    for i in range(16): a(f"v_mul_f32 v{T_+i}, s3, v{v.d0+i}")
    for i in range(16): a(f"v_exp_f32 v{T_+i}, v{T_+i}")
    for i in range(8): a(f"v_pk_add_f32 v[{T_+2*i}:{T_+2*i+1}], v[{T_+2*i}:{T_+2*i+1}], 1.0 op_sel_hi:[1,0]")
    for i in range(16): a(f"v_rcp_f32 v{T_+i}, v{T_+i}")
    a("s_waitcnt vmcnt(0)")
    for i in range(8):
        a(f"v_lshlrev_b32 v{v.ga+2*i}, 16, v{v.gb+i}")
        a(f"v_and_b32 v{v.ga+2*i+1}, 0xffff0000, v{v.gb+i}")
    for i in range(8):
        a(f"v_pk_fma_f32 v[{T_+2*i}:{T_+2*i+1}], v[{T_+2*i}:{T_+2*i+1}], v[{v.d0+2*i}:{v.d0+2*i+1}], v[{v.ga+2*i}:{v.ga+2*i+1}]")
    for i in range(8):
        a(f"v_cvt_pk_bf16_f32 v{v.gb+i}, v{T_+2*i}, v{T_+2*i+1}")
    a(f"s_mov_b64 exec, s[{S_FM}:{S_FM+1}]")
    for jj in range(4):
        a(f"buffer_store_dwordx2 v[{v.gb+2*jj}:{v.gb+2*jj+1}], v{nofs}, s[{S_OUT}:{S_OUT+3}], s{S_Z} offen offset:{16*jj}")
    a("K2_END:\ns_endpgm")

def desc(name, nv, ns):
    nv4 = (nv + 3) // 4 * 4
    return f""".p2align 6
.amdhsa_kernel {name}
  .amdhsa_next_free_vgpr {nv}
  .amdhsa_next_free_sgpr {ns}
  .amdhsa_accum_offset {nv4}
  .amdhsa_group_segment_fixed_size 0
  .amdhsa_kernarg_size 88
  .amdhsa_user_sgpr_count 2
  .amdhsa_user_sgpr_kernarg_segment_ptr 1
  .amdhsa_system_sgpr_workgroup_id_x 1
  .amdhsa_float_denorm_mode_32 3
.end_amdhsa_kernel
"""

def generate():
    a = A()
    hdr = f"""; EGNN layer: K1 partitions edges by destination bin and builds node tables, K2 does the edge MLP + segment sums + node update
; @launch kernel=egnn_part_kernel grid=(256,1,1) block=(1024,1,1) lds={K1_LDS}
; @launch kernel=egnn_main_kernel grid=(256,1,1) block=(512,1,1) lds={K2_LDS}
.amdgcn_target "amdgcn-amd-amdhsa--gfx950"
.text
"""
    gen_k1(a)
    gen_k2(a)
    return hdr + a.text() + '.section .rodata,"a"\n' + desc("egnn_part_kernel", 96, 64) + desc("egnn_main_kernel", K2_VGPRS, 102)

if __name__ == '__main__':
    if '--safe' in sys.argv:
        SAFE = True
        sys.argv.remove('--safe')
    out = sys.argv[1] if len(sys.argv) > 1 else 'gather_scatter__cheap_equivariant_egnn__graph.s'
    open(out, 'w').write(generate())
    print('wrote', out, 'K2 vgprs', K2_VGPRS, 'K2 lds', K2_LDS, 'K1 lds', K1_LDS)
```
